```python
import torch

def _softmax(x, axis=-1):
    return torch.softmax(x, dim=axis)
def _gelu(x):
    return torch.nn.functional.gelu(x, approximate="tanh")
def _silu(x):
    return torch.nn.functional.silu(x)
def _sigmoid(x):
    return torch.sigmoid(x)
def _layernorm(x, axis=-1, eps=1e-5):
    m = x.mean(dim=axis, keepdim=True)
    v = x.var(dim=axis, keepdim=True, unbiased=False)
    return (x - m) / torch.sqrt(v + eps)
def _scatter_add(tgt, idx, src, axis=0):
    return tgt.clone().index_add_(axis, idx, src)
def _segment_sum(src, seg, n):
    out = torch.zeros((n,) + src.shape[1:], dtype=src.dtype)
    return out.index_add_(0, seg, src)
def _pad(x, pw):
    flat = tuple(v for pair in reversed(pw) for v in pair)
    return torch.nn.functional.pad(x, flat)

kernel_name = 'recurrent_scan__sliding_local_dilated__swiglu_ffn__prompt'

def setup_inputs():

    _w = (lambda a: (lambda t: t.to(torch.bfloat16) if t.is_floating_point() else t)(torch.as_tensor(a)))
    def _A_setup():
        B, S, D = 1, 2048, 576
        return {
            "x": _w((lambda *s: torch.randn(*s, dtype=torch.bfloat16) * 0.05)(B, S, D)),
            "wqkv": _w((lambda *s: torch.randn(*s, dtype=torch.bfloat16) * 0.05)(D, 3 * D)),
            "wo": _w((lambda *s: torch.randn(*s, dtype=torch.bfloat16) * 0.05)(D, D)),
        }
    _A_in = _A_setup()

    def _B_setup():
        B, S, D, F = 1, 2048, 576, 4608
        return {
            "x": _w((lambda *s: torch.randn(*s, dtype=torch.bfloat16) * 0.05)(B, S, D)),
            "w_gate": _w((lambda *s: torch.randn(*s, dtype=torch.bfloat16) * 0.05)(D, F)),
            "w_up": _w((lambda *s: torch.randn(*s, dtype=torch.bfloat16) * 0.05)(D, F)),
            "w_down": _w((lambda *s: torch.randn(*s, dtype=torch.bfloat16) * 0.05)(F, D)),
        }
    _B_in = _B_setup()

    return {
        "A_x": _A_in["x"],
        "A_wqkv": _A_in["wqkv"],
        "A_wo": _A_in["wo"],
        "B_x": _B_in["x"],
        "B_w_gate": _B_in["w_gate"],
        "B_w_up": _B_in["w_up"],
        "B_w_down": _B_in["w_down"],
    }

def reference(A_x, A_wqkv, A_wo, B_x, B_w_gate, B_w_up, B_w_down):
    def _A_ref(x, wqkv, wo):
        B, S, D = x.shape
        H = 32; Dh = D // H
        W, dil = 8, 2
        qkv = (lambda x, *d: x.permute(*d))((x @ wqkv).reshape(B, S, 3, H, Dh), 2, 0, 3, 1, 4)
        q, k, v = qkv[0], qkv[1], qkv[2]
        scale = Dh ** -0.5
        pos = torch.arange(S)
        off = torch.arange(W) * dil
        idx = pos[:, None] - off[None, :]
        mask = idx >= 0
        idx_c = torch.where(mask, idx, 0).reshape(-1)
        kg = k[:, :, idx_c, :].reshape(B, H, S, W, Dh)
        vg = v[:, :, idx_c, :].reshape(B, H, S, W, Dh)
        logits = torch.einsum("bhsd,bhswd->bhsw", q, kg) * scale
        logits = torch.where(mask[None, None, :, :], logits, -1e9)
        attn = _softmax(logits, axis=-1)
        o = torch.einsum("bhsw,bhswd->bhsd", attn, vg)
        return (lambda x, *d: x.permute(*d))(o, 0, 2, 1, 3).reshape(B, S, D) @ wo

    def _B_ref(x, w_gate, w_up, w_down):
        g = _silu(x @ w_gate)
        u = x @ w_up
        return (g * u) @ w_down

    x = A_x
    xn = _layernorm(x, axis=-1)
    s = _A_ref(xn, A_wqkv, A_wo)
    g = _silu(_B_ref(xn, B_w_gate, B_w_up, B_w_down))
    return x + s * g
```

```python
import re

_REG = re.compile(r'\b([vsa])(\d+)\b|\b([vsa])\[(\d+):(\d+)\]|\b(vcc|exec|m0|scc)\b')

def regs_of(tok):
    out = []
    for m in _REG.finditer(tok):
        if m.group(1):
            out.append((m.group(1), int(m.group(2))))
        elif m.group(3):
            for i in range(int(m.group(4)), int(m.group(5)) + 1):
                out.append((m.group(3), i))
        else:
            out.append((m.group(6), 0))
    return out

TRANS = ('v_exp_f32', 'v_log_f32', 'v_rcp_f32', 'v_rsq_f32', 'v_sqrt_f32', 'v_sin_f32', 'v_cos_f32', 'v_rcp_iflag_f32')

class Ins:
    __slots__ = ('text', 'op', 'wr', 'rd', 'kind', 'srcc', 'ab', 'states', 'passes', 'store_data', 'is_label')
    def __init__(self, text):
        self.text = text
        self.is_label = False
        t = text.split(';')[0].strip()
        self.wr = []; self.rd = []; self.kind = 'other'; self.srcc = []; self.ab = []
        self.states = 1; self.passes = 0; self.store_data = []
        if t.endswith(':') or t.startswith('.') or not t:
            self.is_label = True; self.states = 0; self.op = ''
            return
        parts = t.split(None, 1)
        op = parts[0]; self.op = op
        rest = parts[1] if len(parts) > 1 else ''
        ops = [o.strip() for o in re.split(r',(?![^\[]*\])', rest)] if rest else []
        if op == 's_nop':
            self.states = int(ops[0], 0) + 1; self.kind = 'nop'; return
        if op.startswith('v_mfma'):
            self.kind = 'mfma'
            self.wr = regs_of(ops[0]); self.ab = regs_of(ops[1]) + regs_of(ops[2]); self.srcc = regs_of(ops[3])
            self.rd = self.ab + self.srcc
            self.passes = 8 if '32x32' in op else 4
            return
        if op.startswith('buffer_') or op.startswith('global_'):
            self.kind = 'vmem'
            is_lds = (' lds' in (' ' + rest)) or ('_lds_' in op)
            if 'store' in op or 'atomic' in op:
                self.rd = regs_of(rest)
                if op.startswith('buffer_'): d = regs_of(ops[0])
                else: d = regs_of(ops[1])
                if len(d) >= 3: self.store_data = d
            elif is_lds:
                self.rd = regs_of(rest) + [('m0', 0)]; self.kind = 'vmem_lds'
            else:
                self.wr = regs_of(ops[0]); self.rd = regs_of(','.join(ops[1:]))
            return
        if op.startswith('ds_'):
            self.kind = 'ds'
            if op.startswith('ds_read') or 'bpermute' in op or 'swizzle' in op or 'permute' in op or '_rtn' in op:
                self.wr = regs_of(ops[0]); self.rd = regs_of(','.join(ops[1:]))
            else:
                self.rd = regs_of(rest)
            return
        if op.startswith('v_'):
            self.kind = 'valu'
            if 'permlane' in op and 'swap' in op:
                self.wr = regs_of(ops[0]) + regs_of(ops[1]); self.rd = list(self.wr); self.kind = 'permlane'
                return
            if op.startswith('v_cmpx'):
                self.wr = regs_of(ops[0]) + [('exec', 0)]; self.rd = regs_of(','.join(ops[1:])); return
            nd = 1
            if op.startswith(('v_add_co', 'v_sub_co', 'v_addc_co', 'v_subb_co', 'v_subrev_co', 'v_div_scale', 'v_mad_u64_u32')): nd = 2
            self.wr = regs_of(','.join(ops[:nd])); self.rd = regs_of(','.join(ops[nd:]))
            if op.startswith(('v_fmac', 'v_dot2c', 'v_pk_fmac')): self.rd += self.wr
            if op.startswith('v_cndmask') and len(ops) == 3: self.rd.append(('vcc', 0))
            if 'dpp' in op or 'row_' in rest or 'quad_perm' in rest: self.kind = 'dpp'
            if op.split('_e32')[0].split('_e64')[0] in TRANS: self.kind = 'trans'
            if op.startswith('v_dot'): self.kind = 'dot'
            return
        if op.startswith('s_'):
            self.kind = 'salu'
            if op.startswith(('s_cmp', 's_cbranch', 's_branch', 's_waitcnt', 's_barrier', 's_endpgm', 's_setprio', 's_sleep')):
                self.rd = regs_of(rest)
            else:
                self.wr = regs_of(ops[0]) if ops else []
                self.rd = regs_of(','.join(ops[1:]))
                if 'saveexec' in op: self.wr.append(('exec', 0))
            return

VALU_KINDS = ('valu', 'trans', 'dpp', 'permlane', 'dot')

def need_states(p, c):
    n = 0
    pw = set(p.wr);
    if p.kind in VALU_KINDS:
        vw = {r for r in pw if r[0] in 'va'}
        sw = {r for r in pw if r[0] in ('s', 'vcc')}
        if c.kind == 'mfma' and vw & set(c.rd): n = max(n, 2)
        if c.kind in ('permlane', 'dpp') and vw & set(c.rd): n = max(n, 2)
        if c.op.startswith(('v_readlane', 'v_readfirstlane')) and vw & set(c.rd): n = max(n, 1)
        if p.kind == 'trans' and c.kind in VALU_KINDS + ('mfma',) and c.kind != 'trans' and vw & set(c.rd): n = max(n, 1)
        if p.kind == 'trans' and c.kind == 'trans' and vw & set(c.rd): n = max(n, 1)
        if p.kind == 'dot':
            if vw & (set(c.rd) | set(c.wr)):
                same_c = (c.op == p.op) and not (vw & set(regs for regs in c.rd if regs not in c.wr))
                if not same_c and c.kind != 'salu': n = max(n, 3)
        if sw and c.kind in VALU_KINDS + ('mfma',) and sw & set(c.rd): n = max(n, 2)
        if sw and c.op.startswith(('v_readlane', 'v_writelane')) and sw & set(c.rd): n = max(n, 4)
        if sw and c.kind in ('vmem', 'vmem_lds') and sw & set(c.rd): n = max(n, 5)
        if sw and c.kind == 'salu' and sw & set(c.rd): n = max(n, 1)
        if ('exec', 0) in pw:
            if c.kind in ('dpp',): n = max(n, 5)
            if c.kind in ('mfma', 'permlane') or c.op.startswith(('v_readlane', 'v_readfirstlane', 'v_writelane')): n = max(n, 4)
    if p.kind == 'salu' and ('m0', 0) in pw and c.kind == 'vmem_lds': n = max(n, 1)
    if p.kind == 'mfma':
        d = set(p.wr)
        big = {4: 8, 8: 12}[p.passes]
        if c.kind == 'mfma':
            if d & set(c.ab): n = max(n, big)
            if d & set(c.srcc):
                if not (set(c.srcc) == d and c.passes == p.passes): n = max(n, {4: 6, 8: 10}[p.passes])
            elif d & set(c.wr):
                n = max(n, big)
        elif c.kind in VALU_KINDS + ('vmem', 'vmem_lds', 'ds'):
            if d & (set(c.rd) | set(c.wr)): n = max(n, big)
        if c.kind in VALU_KINDS and set(p.srcc) & set(c.wr): n = max(n, {4: 3, 8: 7}[p.passes])
    if p.store_data:
        if set(p.store_data) & set(c.wr): n = max(n, 2)
    return n

class Asm:
    def __init__(self):
        self.ins = []
    def __call__(self, text):
        for line in text.strip().split('\n'):
            line = line.strip()
            if line: self.ins.append(Ins(line))
    def label(self, name): self.ins.append(Ins(name + ':'))
    def comment(self, c): self.ins.append(Ins('; ' + c))
    def finalize(self):
        WINDOW = 14
        out = []
        for c in self.ins:
            if c.is_label or c.kind == 'nop':
                out.append(c); continue
            need = 0; dist = 0
            for p in reversed(out):
                if p.is_label: continue
                if p.op in ('s_branch', 's_endpgm'): break
                r = need_states(p, c)
                if r > dist: need = max(need, r - dist)
                dist += p.states
                if dist >= WINDOW: break
            while need > 0:
                k = min(need, 16)
                out.append(Ins(f's_nop {k-1}')); need -= k
            out.append(c)
        self.ins = out
        while True:
            L = self.ins
            label_pos = {}
            for i, c in enumerate(L):
                if c.is_label and c.text.endswith(':'): label_pos[c.text[:-1]] = i
            jumps_to = {}
            for i, c in enumerate(L):
                if not c.is_label and c.op.startswith(('s_cbranch', 's_branch')):
                    tgt = c.text.split(';')[0].split()[1]
                    jumps_to.setdefault(label_pos[tgt], []).append(i)
            inserts = {}
            for ci, c in enumerate(L):
                if c.is_label or c.kind == 'nop': continue
                need = 0
                stack = [(ci - 1, 0, True)]
                seen = set()
                while stack:
                    pos, dist, fall = stack.pop()
                    while pos >= 0 and dist < WINDOW:
                        if (pos, dist) in seen: break
                        seen.add((pos, dist))
                        p = L[pos]
                        if p.is_label:
                            for j in jumps_to.get(pos, []):
                                stack.append((j, dist, False))
                            pos -= 1; fall = True
                            continue
                        if fall and p.op in ('s_branch', 's_endpgm'): break
                        r = need_states(p, c)
                        if r > dist: need = max(need, r - dist)
                        dist += p.states
                        pos -= 1; fall = True
                if need: inserts[ci] = need
            if not inserts: break
            out = []
            first = True
            for ci, c in enumerate(L):
                if ci in inserts:
                    need = inserts[ci]
                    while need > 0:
                        k = min(need, 16)
                        out.append(Ins(f's_nop {k-1}')); need -= k
                out.append(c)
            self.ins = out
    def text(self):
        return '\n'.join(('' if i.is_label and not i.text.startswith(';') else '    ') + i.text for i in self.ins) + '\n'

def v(a, n=1): return f'v{a}' if n == 1 else f'v[{a}:{a+n-1}]'
def s(a, n=1): return f's{a}' if n == 1 else f's[{a}:{a+n-1}]'

def kernel_text(name, asm):
    asm.finalize()
    return f""".globl {name}
.p2align 8
.type {name},@function
{name}:
{asm.text()}"""

def desc_text(name, vgpr, sgpr=96):
    acc = (vgpr + 3) // 4 * 4
    return f""".p2align 6
.amdhsa_kernel {name}
  .amdhsa_next_free_vgpr {vgpr}
  .amdhsa_next_free_sgpr {sgpr}
  .amdhsa_accum_offset {acc}
  .amdhsa_group_segment_fixed_size 0
  .amdhsa_kernarg_size 80
  .amdhsa_user_sgpr_count 2
  .amdhsa_user_sgpr_kernarg_segment_ptr 1
  .amdhsa_system_sgpr_workgroup_id_x 1
.end_amdhsa_kernel
"""
```

```python
import sys, math
sys.path.insert(0, 'gen')
from asmlib import *

NAME = 'recurrent_scan__sliding_local_dilated__swiglu_ffn__prompt'
XN_OFF = 0
XN_SIZE = 128 * 18 * 1024
HC_OFF = 0x400000
HC_T = 162 * 1024
HC_SIZE = 128 * HC_T
WP_OFF = 0x2000000
WP_J = 162 * 4608
WP_SIZE = 8 * WP_J
SRD3 = '0x00020000'
def f32(x):
    import struct
    return '0x%08x' % struct.unpack('<I', struct.pack('<f', x))[0]

class VM:
    def __init__(self, a): self.a = a; self.ops = []
    def issue(self, tag, load=True): self.ops.append((tag, load))
    def wait(self, tag):
        idx = max((i for i, (t, l) in enumerate(self.ops) if t == tag), default=None)
        if idx is None: return
        n = sum(1 for (t, l) in self.ops[idx + 1:] if l)
        assert n <= 63
        self.a(f's_waitcnt vmcnt({n})')
        self.ops = self.ops[idx + 1:]
    def wait_all(self):
        self.a('s_waitcnt vmcnt(0)'); self.ops = []

def srd(a, d, lo, hi, off, size):
    if off:
        a(f's_add_u32 s{d}, s{lo}, {hex(off)}')
        a(f's_addc_u32 s{d+1}, s{hi}, 0')
    else:
        a(f's_mov_b32 s{d}, s{lo}')
        a(f's_mov_b32 s{d+1}, s{hi}')
    a(f's_mov_b32 s{d+2}, {hex(size)}')
    a(f's_mov_b32 s{d+3}, {SRD3}')

def gen_k0():
    a = Asm()
    NJOB = 162 * 9
    NWG = 128 + (NJOB + 3) // 4
    a(f's_cmp_ge_u32 s2, {NWG}')
    a('s_cbranch_scc1 K0_END')
    a('s_load_dwordx2 s[4:5], s[0:1], 0')
    a('s_load_dwordx2 s[6:7], s[0:1], 16')
    a('s_load_dwordx2 s[8:9], s[0:1], 48')
    a('s_load_dwordx2 s[10:11], s[0:1], 72')
    a('s_waitcnt lgkmcnt(0)')
    a('s_cmp_ge_u32 s2, 128')
    a('s_cbranch_scc1 K0_RELAYOUT')
    srd(a, 12, 4, 5, 0, 2048 * 1152)
    srd(a, 16, 10, 11, XN_OFF, XN_SIZE)
    a('v_lshrrev_b32 v1, 4, v0')
    a('v_and_b32 v2, 15, v0')
    a('s_lshl_b32 s3, s2, 4')
    a('v_add_u32 v3, s3, v1')
    a('v_mul_u32_u24 v3, 0x480, v3')
    a('v_lshl_add_u32 v3, v2, 4, v3')
    a('v_cmp_gt_u32 vcc, 8, v2')
    a('v_mov_b32 v5, 0x7fff0000')
    a('v_cndmask_b32 v4, v5, v3, vcc')
    a('v_cndmask_b32 v6, 0, 1.0, vcc')
    for i in range(4):
        a(f'buffer_load_dwordx4 {v(8+4*i,4)}, v3, s[12:15], 0 offen offset:{256*i}')
    a(f'buffer_load_dwordx4 {v(24,4)}, v4, s[12:15], 0 offen offset:1024')
    a('s_waitcnt vmcnt(0)')
    F = 32
    for d in range(20):
        a(f'v_lshlrev_b32 v{F+2*d}, 16, v{8+d}')
        a(f'v_and_b32 v{F+2*d+1}, 0xffff0000, v{8+d}')
    a(f'v_add_f32 v72, v{F}, v{F+1}')
    a(f'v_add_f32 v73, v{F+2}, v{F+3}')
    for d in range(4, 40, 2):
        a(f'v_add_f32 v72, v72, v{F+d}')
        a(f'v_add_f32 v73, v73, v{F+d+1}')
    a('v_add_f32 v72, v72, v73')
    for r in (8, 4, 2, 1):
        a(f'v_add_f32_dpp v72, v72, v72 row_ror:{r} row_mask:0xf bank_mask:0xf')
    a(f'v_mul_f32 v72, {f32(1.0/576)}, v72')
    a('v_mov_b32 v74, 0'); a('v_mov_b32 v75, 0'); a('v_mov_b32 v76, 0')
    for d in range(40):
        a(f'v_sub_f32 v77, v{F+d}, v72' if d % 2 == 0 else f'v_sub_f32 v78, v{F+d}, v72')
        tgt = 76 if d >= 32 else (74 + d % 2)
        r = 77 + d % 2
        a(f'v_fmac_f32 v{tgt}, v{r}, v{r}')
    a('v_add_f32 v74, v74, v75')
    a('v_fmac_f32 v74, v76, v6')
    for r in (8, 4, 2, 1):
        a(f'v_add_f32_dpp v74, v74, v74 row_ror:{r} row_mask:0xf bank_mask:0xf')
    a(f'v_mul_f32 v74, {f32(1.0/576)}, v74')
    def rnd(r):
        a(f'v_cvt_pk_bf16_f32 v{r}, v{r}, v{r}')
        a(f'v_lshlrev_b32 v{r}, 16, v{r}')
    rnd(72); rnd(74)
    a(f'v_add_f32 v74, {f32(1e-5)}, v74'); rnd(74)
    a('v_sqrt_f32 v74, v74'); rnd(74)
    a('v_rcp_f32 v74, v74')
    for d in range(20):
        x0, x1 = F + 2 * d, F + 2 * d + 1
        a(f'v_sub_f32 v{x0}, v{x0}, v72')
        a(f'v_sub_f32 v{x1}, v{x1}, v72')
        a(f'v_cvt_pk_bf16_f32 v{x1}, v{x0}, v{x1}')
        a(f'v_lshlrev_b32 v{x0}, 16, v{x1}')
        a(f'v_and_b32 v{x1}, 0xffff0000, v{x1}')
        a(f'v_mul_f32 v{x0}, v{x0}, v74')
        a(f'v_mul_f32 v{x1}, v{x1}, v74')
        a(f'v_cvt_pk_bf16_f32 v{8+d}, v{x0}, v{x1}')
    a('v_lshlrev_b32 v3, 8, v2')
    a('v_lshl_add_u32 v3, v1, 4, v3')
    for i in range(5):
        a(f'ds_write_b128 v3, {v(8+4*i,4)} offset:{4096*i}')
    a('s_waitcnt lgkmcnt(0)')
    a('s_barrier')
    a('v_lshlrev_b32 v3, 4, v0')
    a('s_mul_i32 s3, s2, 18432')
    for m in range(5):
        a(f'ds_read_b128 {v(8+4*m,4)}, v3 offset:{4096*m}')
    a('v_cmp_gt_u32 vcc, 128, v0')
    a('v_cndmask_b32 v4, v5, v3, vcc')
    a('s_waitcnt lgkmcnt(0)')
    a('s_add_u32 s20, s3, 4096')
    a('s_add_u32 s21, s3, 8192')
    a('s_add_u32 s22, s3, 12288')
    a('s_add_u32 s23, s3, 16384')
    a(f'buffer_store_dwordx4 {v(8,4)}, v3, s[16:19], s3 offen')
    a(f'buffer_store_dwordx4 {v(12,4)}, v3, s[16:19], s20 offen')
    a(f'buffer_store_dwordx4 {v(16,4)}, v3, s[16:19], s21 offen')
    a(f'buffer_store_dwordx4 {v(20,4)}, v3, s[16:19], s22 offen')
    a(f'buffer_store_dwordx4 {v(24,4)}, v4, s[16:19], s23 offen')
    a('s_endpgm')
    a.label('K0_RELAYOUT')
    a('v_lshrrev_b32 v1, 6, v0')
    a('v_readfirstlane_b32 s3, v1')
    a('v_and_b32 v0, 63, v0')
    a('s_sub_u32 s12, s2, 128')
    a('s_lshl_b32 s12, s12, 2')
    a('s_add_u32 s12, s12, s3')
    a(f's_cmp_ge_u32 s12, {NJOB}')
    a('s_cbranch_scc1 K0_END')
    a('s_mul_i32 s13, s12, 7282')
    a('s_lshr_b32 s13, s13, 16')
    a('s_mul_i32 s14, s13, 9')
    a('s_sub_u32 s14, s12, s14')
    a('s_cmp_lt_u32 s13, 144')
    a('s_cselect_b32 s16, s8, s6')
    a('s_cselect_b32 s17, s9, s7')
    a(f's_mov_b32 s18, {hex(576*1152)}')
    a(f's_cselect_b32 s18, {hex(4608*1152)}, s18')
    a(f's_mov_b32 s19, {SRD3}')
    a('s_cselect_b32 s15, 0, 144')
    a('s_sub_u32 s15, s13, s15')
    a(f's_mul_i32 s15, s15, {32*1152}')
    a('s_lshl_b32 s20, s14, 7')
    a('s_add_u32 s15, s15, s20')
    srd(a, 24, 10, 11, WP_OFF, WP_SIZE)
    a('v_lshrrev_b32 v1, 3, v0')
    a('v_mul_u32_u24 v1, 0x480, v1')
    a('v_bfe_u32 v2, v0, 1, 2')
    a('v_lshrrev_b32 v3, 4, v0')
    a('v_xor_b32 v2, v2, v3')
    a('v_lshl_add_u32 v1, v2, 5, v1')
    a('v_and_b32 v2, 1, v0')
    a('v_lshl_add_u32 v1, v2, 4, v1')
    a('s_lshl_b32 s21, s3, 12')
    for i in range(4):
        a(f's_add_u32 m0, s21, {1024*i}')
        a(f'buffer_load_dwordx4 v1, s[16:19], s15 offen lds')
        if i < 3: a(f's_add_u32 s15, s15, {8*1152}')
    a('v_bfe_u32 v4, v0, 2, 2')
    a('v_lshl_add_u32 v5, v3, 2, v4')
    a('v_bfe_u32 v6, v5, 1, 2')
    a('v_lshlrev_b32 v5, 7, v5')
    a('v_lshl_add_u32 v5, v6, 5, v5')
    a('v_and_b32 v6, 3, v0')
    a('v_lshl_add_u32 v5, v6, 3, v5')
    a('v_add_u32 v5, s21, v5')
    for t in range(1, 4):
        a(f'v_xor_b32 v{5+t}, {32*t}, v5')
    a('v_bfe_u32 v9, v0, 3, 1')
    a('v_and_b32 v10, 7, v0')
    a('s_lshl_b32 s20, s14, 3')
    a(f's_mul_i32 s22, s13, 4608')
    for t in range(4):
        a(f'v_add_u32 v16, s20, v9')
        if t: a(f'v_add_u32 v16, {2*t}, v16')
        a('v_mul_u32_u24 v17, 57, v16')
        a('v_lshrrev_b32 v17, 9, v17')
        a('v_mul_u32_u24 v18, 9, v17')
        a('v_sub_u32 v18, v16, v18')
        a('v_and_b32 v19, 1, v18')
        a('v_lshl_add_u32 v19, v19, 3, v10')
        a('v_lshl_add_u32 v19, v3, 4, v19')
        a('v_lshlrev_b32 v19, 4, v19')
        a('v_lshrrev_b32 v20, 1, v18')
        a('v_lshl_add_u32 v19, v20, 10, v19')
        a('v_lshl_add_u32 v20, v3, 3, v10')
        a('v_lshlrev_b32 v20, 4, v20')
        a('v_add_u32 v20, 0x1000, v20')
        a('v_cmp_gt_u32 vcc, 8, v18')
        a('v_cndmask_b32 v19, v20, v19, vcc')
        a(f'v_mul_u32_u24 v17, {hex(WP_J)}, v17')
        a(f'v_add_u32 v{12+t}, v17, v19')
    a('s_waitcnt vmcnt(0)')
    for t in range(4):
        a(f'ds_read_b64_tr_b16 {v(24+4*t,2)}, v{5+t}')
        a(f'ds_read_b64_tr_b16 {v(26+4*t,2)}, v{5+t} offset:2048')
    a('s_waitcnt lgkmcnt(0)')
    for t in range(4):
        a(f'buffer_store_dwordx4 {v(24+4*t,4)}, v{12+t}, s[24:27], s22 offen')
    a.label('K0_END')
    a('s_endpgm')
    return a, NWG, 256, 20480, 80

def gen_k1():
    a = Asm(); vm = VM(a)
    R = 7; SLOT = 16384
    TAB = R * SLOT; PITCH = 144
    HALO = TAB + 272 * PITCH
    LDS = HALO + 3072
    XB = 0; AB = 144; WF = 208; NB = 6; M = 232
    def X(tt, ks): return XB + (ks * 2 + tt) * 4
    def ACC(tt, sl): return AB + (sl * 2 + tt) * 4
    TA = [M, M + 1, M + 2, M + 3]; TT = M + 4
    vW = M + 5; vQ = M + 6; vF = M + 8 ; vFs = M + 7
    vL16 = M + 10; vLane = M + 11
    XH = [ACC(1, 7), M + 12, M + 16]
    T0 = M + 20
    sWave = 3; sCg = 20; sC = 21; sI = 22; sHd = 23
    sW1k = 24; sOff = 25; sTmp = 26; sTmp2 = 27; sT0 = 28; sMask = 30
    SG, SU, SQ, SX, SH = 32, 36, 40, 44, 48
    sNL2E = 52; sColA = 53; sQoff = 54; sHbase = 55
    a('s_cmp_ge_u32 s2, 256')
    a('s_cbranch_scc1 K1_END')
    a('s_load_dwordx2 s[4:5], s[0:1], 8')
    a('s_load_dwordx2 s[6:7], s[0:1], 32')
    a('s_load_dwordx2 s[8:9], s[0:1], 40')
    a('s_load_dwordx2 s[10:11], s[0:1], 72')
    a(f'v_lshrrev_b32 v1, 6, v0')
    a(f'v_and_b32 v{vLane}, 63, v0')
    a(f'v_readfirstlane_b32 s{sWave}, v1')
    a(f's_and_b32 s{sCg}, s2, 7')
    a(f's_lshr_b32 s{sTmp}, s2, 3')
    a(f's_and_b32 s{sC}, s{sTmp}, 3')
    a(f's_lshr_b32 s{sI}, s{sTmp}, 2')
    a(f's_lshl_b32 s{sHd}, s{sCg}, 2')
    a(f's_add_u32 s{sHd}, s{sHd}, s{sC}')
    a(f's_lshl_b32 s{sW1k}, s{sWave}, 10')
    a(f's_lshl_b32 s{sT0}, s{sI}, 4')
    a(f's_lshl_b32 s{sTmp}, s{sWave}, 1')
    a(f's_add_u32 s{sT0}, s{sT0}, s{sTmp}')
    a(f's_mov_b32 s{sNL2E}, {f32(-1.4426950408889634)}')
    a(f's_mul_i32 s{sColA}, s{sCg}, 1152')
    a(f's_lshl_b32 s{sTmp}, s{sC}, 8')
    a(f's_add_u32 s{sColA}, s{sColA}, s{sTmp}')
    a(f's_mul_i32 s{sQoff}, s{sHd}, 36')
    a(f'v_lshlrev_b32 v{vL16}, 4, v{vLane}')
    a('v_lshlrev_b32 v2, 2, v0')
    a('v_mov_b32 v3, 0')
    a(f'v_add_u32 v2, {HALO}, v2')
    a('ds_write_b32 v2, v3')
    a('ds_write_b32 v2, v3 offset:1024')
    a(f'v_lshrrev_b32 v1, 3, v{vLane}')
    a(f'v_bfe_u32 v2, v{vLane}, 4, 1')
    a(f's_and_b32 s{sTmp}, s{sWave}, 1')
    a(f's_lshl_b32 s{sTmp}, s{sTmp}, 1')
    a(f'v_or_b32 v2, s{sTmp}, v2')
    a(f'v_bfe_u32 v3, v{vLane}, 1, 2')
    a('v_xor_b32 v3, v3, v2')
    a(f'v_and_b32 v4, 1, v{vLane}')
    a(f's_lshl_b32 s{sTmp}, s{sWave}, 3')
    a(f'v_add_u32 v1, s{sTmp}, v1')
    a('v_lshlrev_b32 v5, 5, v3')
    a('v_lshl_add_u32 v5, v4, 4, v5')
    a(f'v_mul_u32_u24 v{vW}, 0x2400, v1')
    a(f'v_add_u32 v{vW}, v{vW}, v5')
    a('v_mul_u32_u24 v6, 0x480, v3')
    a('v_lshl_add_u32 v6, v4, 4, v6')
    a('v_mul_u32_u24 v7, 0x480, v4')
    a(f'v_add_u32 v7, {1152+20}, v7')
    a('v_cmp_eq_u32 vcc, 3, v3')
    a('v_cndmask_b32 v6, v6, v7, vcc')
    a(f'v_mul_u32_u24 v{vQ}, 0xd80, v1')
    a(f'v_add_u32 v{vQ}, v{vQ}, v6')
    a('s_waitcnt lgkmcnt(0)')
    srd(a, SG, 6, 7, 0, 576 * 9216)
    srd(a, SU, 8, 9, 0, 576 * 9216)
    srd(a, SQ, 4, 5, 0, 576 * 3456)
    srd(a, SX, 10, 11, XN_OFF, XN_SIZE)
    srd(a, SH, 10, 11, HC_OFF, HC_SIZE)
    a(f's_mul_i32 s{sTmp}, s{sCg}, 1152')
    a(f's_lshl_b32 s{sTmp2}, s{sC}, 5')
    a(f's_add_u32 s{sTmp}, s{sTmp}, s{sTmp2}')
    a(f's_add_u32 s{sTmp}, s{sTmp}, 1024')
    a('v_mul_u32_u24 v6, 0x2400, v1')
    a('v_lshl_add_u32 v6, v4, 4, v6')
    a(f'v_add_u32 v6, s{sTmp}, v6')
    a('v_mul_u32_u24 v7, 0xd80, v1')
    a(f's_add_u32 s{sTmp}, s{sQoff}, 20')
    a(f'v_add_u32 v7, s{sTmp}, v7')
    a('v_cmp_gt_u32 vcc, 2, v3')
    a('v_cndmask_b32 v6, v7, v6, vcc')
    a(f'v_mov_b32 v7, {hex(64*3456)}')
    a(f'v_mov_b32 v8, {hex(64*9216)}')
    a(f'v_cndmask_b32 v{vFs}, v7, v8, vcc')
    a('v_mov_b32 v8, s4'); a('v_mov_b32 v9, s5')
    a('v_mov_b32 v10, s6'); a('v_mov_b32 v11, s7')
    a('v_cmp_eq_u32 vcc, 0, v3')
    a('v_cndmask_b32 v8, v8, v10, vcc'); a('v_cndmask_b32 v9, v9, v11, vcc')
    a('v_mov_b32 v10, s8'); a('v_mov_b32 v11, s9')
    a('v_cmp_eq_u32 vcc, 1, v3')
    a('v_cndmask_b32 v8, v8, v10, vcc'); a('v_cndmask_b32 v9, v9, v11, vcc')
    a(f'v_add_co_u32 v{vF}, vcc, v8, v6')
    a(f'v_addc_co_u32 v{vF+1}, vcc, 0, v9, vcc')
    a('v_lshl_add_u32 v6, v3, 1, v4')
    a(f'v_cmp_gt_u32 {s(sMask,2)}, 5, v6')
    a(f'v_lshrrev_b32 v1, 4, v{vLane}')
    a(f'v_bfe_u32 v2, v{vLane}, 2, 2')
    a(f'v_and_b32 v3, 3, v{vLane}')
    a(f'v_bfe_u32 v4, v{vLane}, 3, 2')
    a('v_lshl_add_u32 v5, v1, 3, v2')
    a('v_lshlrev_b32 v5, 7, v5')
    a('v_lshl_add_u32 v6, v4, 5, v5')
    a(f'v_lshl_add_u32 v{TA[0]}, v3, 3, v6')
    for t in range(1, 4):
        a(f'v_xor_b32 v{TA[t]}, {32*t}, v{TA[0]}')
    a('v_xor_b32 v7, 96, v6')
    a('v_lshl_add_u32 v7, v3, 4, v7')
    a('v_add_u32 v7, 8, v7')
    a('v_xor_b32 v8, 64, v6')
    a(f'v_add_u32 v8, {8192+8}, v8')
    a('v_cmp_gt_u32 vcc, 2, v3')
    a(f'v_cndmask_b32 v{TT}, v8, v7, vcc')

    NST = 27
    def pass_of(st): return st // 9
    def dma(st):
        slot = st % R; ls = st % 9; p = pass_of(st)
        if p != 1:
            off = ls * 64 * 9216 + (128 if p == 2 else 0)
            a(f's_add_u32 s{sOff}, s{sColA}, {hex(off)}')
            a(f's_add_u32 m0, s{sW1k}, {slot*SLOT}')
            a(f'buffer_load_dwordx4 v{vW}, {s(SG,4)}, s{sOff} offen lds'); vm.issue(('W', st))
            a(f's_add_u32 m0, s{sW1k}, {slot*SLOT+8192}')
            a(f'buffer_load_dwordx4 v{vW}, {s(SU,4)}, s{sOff} offen lds'); vm.issue(('W', st))
        else:
            a(f's_add_u32 s{sOff}, s{sQoff}, {hex(ls*64*3456)}')
            a(f's_add_u32 m0, s{sW1k}, {slot*SLOT}')
            a(f'buffer_load_dwordx4 v{vQ}, {s(SQ,4)}, s{sOff} offen lds'); vm.issue(('W', st))
            a(f's_add_u32 m0, s{sW1k}, {slot*SLOT+8192}')
            a(f's_mov_b64 exec, {s(sMask,2)}')
            a(f'global_load_lds_dwordx4 {v(vF,2)}, off'); vm.issue(('W', st))
            a('s_mov_b64 exec, -1')
            if ls < 8:
                a(f'v_add_co_u32 v{vF}, vcc, v{vF}, v{vFs}')
                a(f'v_addc_co_u32 v{vF+1}, vcc, 0, v{vF+1}, vcc')
    def xload(st):
        for tt in range(2):
            a(f's_add_u32 s{sTmp}, s{sT0}, {tt}')
            a(f's_mul_i32 s{sTmp}, s{sTmp}, 18432')
            a(f's_add_u32 s{sTmp}, s{sTmp}, {2048*st}')
            for k2 in range(2):
                a(f'buffer_load_dwordx4 {v(X(tt,2*st+k2),4)}, v{vL16}, {s(SX,4)}, s{sTmp} offen offset:{1024*k2}')
                vm.issue(('X', st))
    for st in range(R - 1):
        dma(st); xload(st)
    for st in range(R - 1, 9): xload(st)
    vm.wait(('W', 0))
    a('s_waitcnt lgkmcnt(0)')
    a('s_barrier')
    state = {'win': 0}
    def set_window(st):
        w = (st % R) >> 2
        if w != state['win']:
            for r in TA + [TT]: a(f'v_xor_b32 v{r}, 0x10000, v{r}')
            state['win'] = w
    def frag_reads(p, st, k2, j, buf):
        set_window(st)
        base = ((st % R) & 3) * SLOT + k2 * 4096
        if p != 1:
            ad = TA[j & 3]; off = base + (8192 if j >= 4 else 0)
        else:
            if j < 2: ad = TA[j]; off = base + 8192
            elif j < 5: ad = TA[j - 2]; off = base
            else: ad = TT; off = base
        a(f'ds_read_b64_tr_b16 {v(WF+4*buf,2)}, v{ad} offset:{off}')
        a(f'ds_read_b64_tr_b16 {v(WF+4*buf+2,2)}, v{ad} offset:{off+512}')
    def sync_point(st):
        if st + 1 < NST:
            vm.wait(('W', st + 1))
        a('s_barrier')
        nx = st - 1 + R
        if nx < NST and nx >= R - 1: dma(nx)
    def run_pass(p):
        nt = 6 if p == 1 else 8
        PD = 4 if p != 1 else 3
        frs = [(p * 9 + ks // 2, ks % 2, j, ks) for ks in range(18) for j in range(nt)]
        n = len(frs)
        for q in range(PD):
            st, k2, j, ks = frs[q]; frag_reads(p, st, k2, j, q % NB)
        for q in range(n):
            st, k2, j, ks = frs[q]
            if k2 == 1 and j == 0: sync_point(st)
            if p == 0 and k2 == 0 and j == 0: vm.wait(('X', st))
            if q + PD < n:
                st2, k22, j2, ks2 = frs[q + PD]; frag_reads(p, st2, k22, j2, (q + PD) % NB)
                a(f's_waitcnt lgkmcnt({2*PD})')
            else:
                a(f's_waitcnt lgkmcnt({2*(n-1-q)})')
            for tt in range(2):
                c = '0' if ks == 0 else v(ACC(tt, j), 4)
                a(f'v_mfma_f32_16x16x32_bf16 {v(ACC(tt,j),4)}, {v(WF+4*(q%NB),4)}, {v(X(tt,ks),4)}, {c}')
            if p == 1 and j == 5:
                lab = f'K1_HS{ks}'
                if ks % 8 == 0: vm.wait(('XH', 0))
                a(f's_cmp_eq_u32 s{sWave}, {ks % 8}')
                a(f's_cbranch_scc0 {lab}')
                hacc = [ACC(0, 6), ACC(1, 6), ACC(0, 7)]
                for m in range(3):
                    a(f'v_mfma_f32_16x16x32_bf16 {v(hacc[m],4)}, {v(WF+4*((q-2+m)%NB),4)}, {v(XH[ks//8],4)}, {v(hacc[m],4)}')
                a.label(lab)
    def silu_mul(Gs, Us, tmps):
        for g, t in zip(Gs, tmps): a(f'v_mul_f32 v{t}, s{sNL2E}, v{g}')
        for t in tmps: a(f'v_exp_f32 v{t}, v{t}')
        for g, u in zip(Gs, Us): a(f'v_mul_f32 v{g}, v{g}, v{u}')
        for t in tmps: a(f'v_add_f32 v{t}, 1.0, v{t}')
        for t in tmps: a(f'v_rcp_f32 v{t}, v{t}')
        for g, t in zip(Gs, tmps): a(f'v_mul_f32 v{g}, v{g}, v{t}')
    def epilogue_ab(p):
        a(f's_mul_i32 s{sHbase}, s{sCg}, 18')
        a(f's_lshl_b32 s{sTmp}, s{sC}, 2')
        a(f's_add_u32 s{sHbase}, s{sHbase}, s{sTmp}')
        if p == 2: a(f's_add_u32 s{sHbase}, s{sHbase}, 2')
        a(f's_lshl_b32 s{sHbase}, s{sHbase}, 10')
        k = 0
        for tt in range(2):
            a(f's_add_u32 s{sTmp}, s{sT0}, {tt}')
            a(f's_mul_i32 s{sTmp}, s{sTmp}, {HC_T}')
            a(f's_add_u32 s{sTmp}, s{sTmp}, s{sHbase}')
            for pp in range(2):
                Gs = [ACC(tt, 2 * pp + h) + r for h in range(2) for r in range(4)]
                Us = [ACC(tt, 4 + 2 * pp + h) + r for h in range(2) for r in range(4)]
                tm = [WF + i for i in range(8)]
                silu_mul(Gs, Us, tm)
                o = WF + 8 + 4 * (k % 4); k += 1
                for d in range(4): a(f'v_cvt_pk_bf16_f32 v{o+d}, v{Gs[2*d]}, v{Gs[2*d+1]}')
                a(f'buffer_store_dwordx4 {v(o,4)}, v{vL16}, {s(SH,4)}, s{sTmp} offen offset:{1024*pp}'); vm.issue('st', False)
    run_pass(0)
    epilogue_ab(0)
    a(f's_lshl_b32 s{sTmp}, s{sI}, 4')
    a(f's_max_u32 s{sTmp}, s{sTmp}, 1')
    a(f's_sub_u32 s{sTmp}, s{sTmp}, 1')
    a(f's_mul_i32 s{sTmp}, s{sTmp}, 18432')
    a(f's_add_u32 s{sTmp}, s{sTmp}, s{sW1k}')
    for m in range(3):
        a(f'buffer_load_dwordx4 {v(XH[m],4)}, v{vL16}, {s(SX,4)}, s{sTmp} offen'); vm.issue(('XH', 0))
        if m < 2: a(f's_add_u32 s{sTmp}, s{sTmp}, 8192')
    for r in range(12): a(f'v_mov_b32 v{ACC(0,6)+r}, 0')
    run_pass(1)
    a(f's_mul_i32 s{sHbase}, s{sCg}, 18')
    a(f's_lshr_b32 s{sTmp}, s{sC}, 1')
    a(f's_add_u32 s{sHbase}, s{sHbase}, s{sTmp}')
    a(f's_add_u32 s{sHbase}, s{sHbase}, 16')
    a(f's_lshl_b32 s{sHbase}, s{sHbase}, 10')
    a(f's_and_b32 s{sTmp}, s{sC}, 1')
    a(f's_lshl_b32 s{sTmp}, s{sTmp}, 3')
    a(f's_add_u32 s{sHbase}, s{sHbase}, s{sTmp}')
    Gs = [ACC(tt, 0) + r for tt in range(2) for r in range(4)]
    Us = [ACC(tt, 1) + r for tt in range(2) for r in range(4)]
    silu_mul(Gs, Us, [WF + i for i in range(8)])
    for tt in range(2):
        o = WF + 8 + 2 * tt
        for d in range(2): a(f'v_cvt_pk_bf16_f32 v{o+d}, v{Gs[4*tt+2*d]}, v{Gs[4*tt+2*d+1]}')
        a(f's_add_u32 s{sTmp}, s{sT0}, {tt}')
        a(f's_mul_i32 s{sTmp}, s{sTmp}, {HC_T}')
        a(f's_add_u32 s{sTmp}, s{sTmp}, s{sHbase}')
        a(f'buffer_store_dwordx2 {v(o,2)}, v{vL16}, {s(SH,4)}, s{sTmp} offen'); vm.issue('st', False)
    t0, t1, t2, t3 = T0, T0 + 1, T0 + 2, T0 + 3
    a(f'v_lshlrev_b32 v{t0}, 2, v{vLane}')
    a(f'v_add_u32 v{t0}, {HALO}, v{t0}')
    for r in range(12): a(f'ds_add_f32 v{t0}, v{ACC(0,6)+r} offset:{256*r}')
    a(f'v_and_b32 v{t1}, 15, v{vLane}')
    a(f'v_mul_u32_u24 v{t1}, {PITCH}, v{t1}')
    a(f'v_lshrrev_b32 v{t2}, 4, v{vLane}')
    a(f'v_lshl_add_u32 v{t1}, v{t2}, 3, v{t1}')
    a(f's_mul_i32 s{sTmp}, s{sWave}, {32*PITCH}')
    a(f's_add_u32 s{sTmp}, s{sTmp}, {TAB+16*PITCH}')
    a(f'v_add_u32 v{t2}, s{sTmp}, v{t1}')
    for tt in range(2):
        for tile in range(4):
            ac = ACC(tt, 2 + tile); o = WF + 12 + 2 * (tile % 2)
            a(f'v_cvt_pk_bf16_f32 v{o}, v{ac}, v{ac+1}')
            a(f'v_cvt_pk_bf16_f32 v{o+1}, v{ac+2}, v{ac+3}')
            a(f'ds_write_b64 v{t2}, {v(o,2)} offset:{tt*16*PITCH+tile*32}')
    a('s_waitcnt lgkmcnt(0)')
    a('s_barrier')
    a(f's_cmp_eq_u32 s{sWave}, 0')
    a('s_cbranch_scc0 K1_NOHALO')
    for r in range(12): a(f'ds_read_b32 v{AB+r}, v{t0} offset:{256*r}')
    a(f'v_add_u32 v{t2}, {TAB}, v{t1}')
    a('s_waitcnt lgkmcnt(0)')
    for m in range(3):
        o = WF + 12 + 2 * (m % 2)
        a(f'v_cvt_pk_bf16_f32 v{o}, v{AB+4*m}, v{AB+4*m+1}')
        a(f'v_cvt_pk_bf16_f32 v{o+1}, v{AB+4*m+2}, v{AB+4*m+3}')
        a(f'ds_write_b64 v{t2}, {v(o,2)} offset:{(1+m)*32}')
    a('s_waitcnt lgkmcnt(0)')
    a.label('K1_NOHALO')
    A = AB
    q = A
    kb = A + 12
    kb2 = A + 24
    lg = A + 36
    hi = A + 40
    vt = A + 44
    oacc = A + 48
    adr = A + 58
    tl = A + 60; hf = A + 61; rowi = A + 62; tmp = A + 63
    a(f'v_and_b32 v{tl}, 31, v{vLane}')
    a(f'v_lshrrev_b32 v{hf}, 5, v{vLane}')
    a(f's_lshl_b32 s{sTmp}, s{sWave}, 5')
    a(f's_add_u32 s{sTmp}, s{sTmp}, 16')
    a(f'v_add_u32 v{rowi}, s{sTmp}, v{tl}')
    a(f'v_mul_u32_u24 v{adr}, {PITCH}, v{rowi}')
    a(f'v_add_u32 v{adr}, {TAB}, v{adr}')
    a(f'ds_read_b128 {v(q,4)}, v{adr}')
    a(f'ds_read_b128 {v(q+4,4)}, v{adr} offset:16')
    a(f'ds_read_b32 v{q+8}, v{adr} offset:{29*4}')
    a(f's_cmp_eq_u32 s{sI}, 0')
    a(f's_cselect_b32 s{sTmp2}, 16, 0')
    a(f'v_lshlrev_b32 v{tmp}, 3, v{hf}')
    a(f'v_sub_u32 v{tmp}, v{rowi}, v{tmp}')
    nb = [WF + j for j in range(4)]
    for j in range(4):
        a(f'v_subrev_u32 v{nb[j]}, {2*j}, v{tmp}')
        a(f'v_cmp_le_u32 {s(56+2*j,2)}, s{sTmp2}, v{nb[j]}')
        a(f'v_max_u32 v{nb[j]}, s{sTmp2}, v{nb[j]}')
        a(f'v_mul_u32_u24 v{nb[j]}, {PITCH}, v{nb[j]}')
        a(f'v_add_u32 v{nb[j]}, {TAB}, v{nb[j]}')
    scale = (18 ** -0.5) * 1.4426950408889634
    bufs = [kb, kb2]
    def kread(j):
        b = bufs[j % 2]
        a(f'ds_read_b128 {v(b,4)}, v{nb[j]} offset:32')
        a(f'ds_read_b128 {v(b+4,4)}, v{nb[j]} offset:48')
        a(f'ds_read_b128 {v(b+8,4)}, v{nb[j]} offset:96')
    kread(0)
    for j in range(4):
        if j < 3: kread(j + 1); a('s_waitcnt lgkmcnt(3)')
        else: a('s_waitcnt lgkmcnt(0)')
        b = bufs[j % 2]
        a(f'v_dot2_f32_bf16 v{lg+j}, v{q}, v{b}, 0')
        for d in range(1, 8): a(f'v_dot2_f32_bf16 v{lg+j}, v{q+d}, v{b+d}, v{lg+j}')
        a(f'v_dot2_f32_bf16 v{lg+j}, v{q+8}, v{b+9}, v{lg+j}')
        a(f'v_mov_b32 v{vt+j}, v{b+11}')
    a(f'v_mov_b32 v{tmp}, {f32(-1e9*1.4426950408889634)}')
    for j in range(4):
        a(f'v_mul_f32 v{lg+j}, {f32(scale)}, v{lg+j}')
        a(f'v_cndmask_b32 v{lg+j}, v{tmp}, v{lg+j}, {s(56+2*j,2)}')
        a(f'v_mov_b32 v{hi+j}, v{lg+j}')
    for j in range(4):
        a(f'v_permlane32_swap_b32 v{lg+j}, v{hi+j}')
    L = [lg + j for j in range(8)]
    mx = q
    a(f'v_max3_f32 v{mx}, v{L[0]}, v{L[1]}, v{L[2]}')
    a(f'v_max3_f32 v{mx}, v{mx}, v{L[3]}, v{L[4]}')
    a(f'v_max3_f32 v{mx}, v{mx}, v{L[5]}, v{L[6]}')
    a(f'v_max_f32 v{mx}, v{mx}, v{L[7]}')
    for j in range(8): a(f'v_sub_f32 v{L[j]}, v{L[j]}, v{mx}')
    for j in range(8): a(f'v_exp_f32 v{L[j]}, v{L[j]}')
    sm = q + 1
    a(f'v_add_f32 v{sm}, v{L[0]}, v{L[1]}')
    for j in range(2, 8): a(f'v_add_f32 v{sm}, v{sm}, v{L[j]}')
    a(f'v_rcp_f32 v{sm}, v{sm}')
    for j in range(8): a(f'v_mul_f32 v{L[j]}, v{L[j]}, v{sm}')
    plo = [WF + 8 + j for j in range(8)]; phi = [WF + 16 + j for j in range(8)]
    for j in range(8):
        a(f'v_cvt_pk_bf16_f32 v{plo[j]}, v{L[j]}, 0')
        a(f'v_lshlrev_b32 v{phi[j]}, 16, v{plo[j]}')
    va = [q + 2 + (j % 2) for j in range(8)]
    a(f'v_lshlrev_b32 v{tmp}, 4, v{hf}')
    a(f'v_add_u32 v{tmp}, {TAB+64}, v{tmp}')
    vb = [kb, kb + 4, kb + 8, kb2, kb2 + 4, kb2 + 8]
    def vread(j):
        r = va[j]
        a(f'v_subrev_u32 v{r}, {2*j}, v{rowi}')
        a(f'v_max_u32 v{r}, s{sTmp2}, v{r}')
        a(f'v_mad_u32_u24 v{r}, v{r}, s{sTmp}, v{tmp}')
        a(f'ds_read_b128 {v(vb[j%6],4)}, v{r}')
    a(f's_mov_b32 s{sTmp}, {PITCH}')
    for j in range(4): vread(j)
    for j in range(8):
        if j + 4 < 8: vread(j + 4); a('s_waitcnt lgkmcnt(4)')
        else: a(f's_waitcnt lgkmcnt({7-j})')
        b = vb[j % 6]
        for d in range(4):
            c0 = '0' if j == 0 else f'v{oacc+2*d}'; c1 = '0' if j == 0 else f'v{oacc+2*d+1}'
            a(f'v_dot2_f32_bf16 v{oacc+2*d}, v{b+d}, v{plo[j]}, {c0}')
            a(f'v_dot2_f32_bf16 v{oacc+2*d+1}, v{b+d}, v{phi[j]}, {c1}')
    a(f'v_cmp_eq_u32 vcc, 1, v{hf}')
    for j in range(4):
        a(f'v_cndmask_b32 v{plo[j]}, v{plo[j]}, v{plo[4+j]}, vcc')
        a(f'v_cndmask_b32 v{phi[j]}, v{phi[j]}, v{phi[4+j]}, vcc')
    for j in range(4):
        c0 = '0' if j == 0 else f'v{oacc+8}'; c1 = '0' if j == 0 else f'v{oacc+9}'
        a(f'v_dot2_f32_bf16 v{oacc+8}, v{vt+j}, v{plo[j]}, {c0}')
        a(f'v_dot2_f32_bf16 v{oacc+9}, v{vt+j}, v{phi[j]}, {c1}')
    a(f'v_mov_b32 v{q}, v{oacc+8}'); a(f'v_mov_b32 v{q+1}, v{oacc+9}')
    a(f'v_permlane32_swap_b32 v{oacc+8}, v{q}')
    a(f'v_permlane32_swap_b32 v{oacc+9}, v{q+1}')
    a(f'v_add_f32 v{oacc+8}, v{oacc+8}, v{q}')
    a(f'v_add_f32 v{oacc+9}, v{oacc+9}, v{q+1}')
    od = kb
    for d in range(5): a(f'v_cvt_pk_bf16_f32 v{od+d}, v{oacc+2*d}, v{oacc+2*d+1}')
    a(f'v_lshrrev_b32 v{tmp}, 4, v{tl}')
    a(f'v_add_u32 v{tmp}, s{sT0}, v{tmp}')
    a(f's_mov_b32 s{sTmp}, {HC_T}')
    a(f'v_mul_lo_u32 v{adr}, v{tmp}, s{sTmp}')
    a(f'v_and_b32 v{tmp}, 15, v{tl}')
    a(f'v_lshl_add_u32 v{adr}, v{tmp}, 4, v{adr}')
    a(f's_mul_i32 s{sTmp2}, s{sHd}, 18')
    ph = q; w1 = q + 1; w2 = q + 2
    for d in range(5):
        if d < 4:
            a(f'v_lshl_add_u32 v{ph}, v{hf}, 3, s{sTmp2}')
            if d: a(f'v_add_u32 v{ph}, {2*d}, v{ph}')
        else:
            a(f'v_mov_b32 v{ph}, s{sTmp2}')
            a(f'v_add_u32 v{ph}, 16, v{ph}')
        a(f'v_lshrrev_b32 v{w1}, 5, v{ph}')
        a(f'v_lshl_add_u32 v{w1}, v{w1}, 10, v{adr}')
        a(f'v_bfe_u32 v{w2}, v{ph}, 2, 2')
        a(f'v_lshl_add_u32 v{w1}, v{w2}, 8, v{w1}')
        a(f'v_bfe_u32 v{w2}, v{ph}, 4, 1')
        a(f'v_lshl_add_u32 v{w1}, v{w2}, 3, v{w1}')
        a(f'v_and_b32 v{w2}, 3, v{ph}')
        a(f'v_lshl_add_u32 v{q+4+d}, v{w2}, 1, v{w1}')
    a(f's_mov_b32 s{sTmp}, {144*1024}')
    for d in range(5):
        a(f'buffer_store_dword v{od+d}, v{q+4+d}, {s(SH,4)}, s{sTmp} offen'); vm.issue('st', False)
    run_pass(2)
    epilogue_ab(2)
    a.label('K1_END')
    a('s_endpgm')
    return a, 256, 512, LDS, 256

def gen_k2():
    a = Asm(); vm = VM(a)
    KS = 8; NSTG = 21; RS = 4; SLOT = KS * 4608
    LDS = RS * SLOT
    HB = 0
    AC1 = 128; AC2 = 148
    WF = 168; NB = 8
    M = 200
    RA = [M + i for i in range(4)]; RH = [M + 4 + i for i in range(4)]
    vL16 = M + 8; vLane = M + 9; vXo = M + 10; vXo4 = M + 11
    XR = M + 12
    T0 = M + 22
    NV = M + 32
    sWave = 3; sJ = 20; sT = 21; sTmp = 22; sM0 = 23; sWo = 24; sHo = 25; sNL2E = 26
    SW, SH, SX, SO = 32, 36, 40, 44
    a('s_cmp_ge_u32 s2, 256')
    a('s_cbranch_scc1 K2_END')
    a('s_load_dwordx2 s[4:5], s[0:1], 0')
    a('s_load_dwordx2 s[6:7], s[0:1], 56')
    a('s_load_dwordx2 s[10:11], s[0:1], 72')
    a('v_lshrrev_b32 v1, 6, v0')
    a(f'v_and_b32 v{vLane}, 63, v0')
    a(f'v_readfirstlane_b32 s{sWave}, v1')
    a(f's_and_b32 s{sTmp}, s2, 7')
    a(f's_lshl_b32 s{sT}, s{sTmp}, 2')
    a(f's_lshr_b32 s{sTmp}, s2, 3')
    a(f's_lshr_b32 s{sJ}, s{sTmp}, 2')
    a(f's_and_b32 s{sTmp}, s{sTmp}, 3')
    a(f's_add_u32 s{sT}, s{sT}, s{sTmp}')
    a(f's_lshl_b32 s{sT}, s{sT}, 2')
    a(f's_add_u32 s{sT}, s{sT}, s{sWave}')
    a(f's_mov_b32 s{sNL2E}, {f32(-1.4426950408889634)}')
    a(f'v_lshlrev_b32 v{vL16}, 4, v{vLane}')
    a(f's_mul_i32 s{sM0}, s{sWave}, 9216')
    a(f's_mul_i32 s{sHo}, s{sT}, {HC_T}')
    a(f's_mul_i32 s{sTmp}, s{sJ}, {WP_J}')
    a('s_waitcnt lgkmcnt(0)')
    a(f's_add_u32 s{SW}, s10, s{sTmp}')
    a(f's_addc_u32 s{SW+1}, s11, 0')
    a(f's_add_u32 s{SW}, s{SW}, {hex(WP_OFF)}')
    a(f's_addc_u32 s{SW+1}, s{SW+1}, 0')
    a(f's_mov_b32 s{SW+2}, {hex(WP_J)}')
    a(f's_mov_b32 s{SW+3}, {SRD3}')
    srd(a, SH, 10, 11, HC_OFF, HC_SIZE)
    srd(a, SX, 4, 5, 0, 2048 * 1152)
    srd(a, SO, 6, 7, 0, 2048 * 1152)
    def dma(st):
        slot = st % RS
        for grp in range(3):
            a(f's_add_u32 s{sWo}, s{sM0}, {st*SLOT + grp*4096}')
            a(f's_add_u32 m0, s{sM0}, {slot*SLOT + grp*4096}')
            for m in range(4 if grp < 2 else 1):
                a(f'buffer_load_dwordx4 v{vL16}, {s(SW,4)}, s{sWo} offen offset:{1024*m} lds'); vm.issue(('W', st))
    def nks(st): return KS if st < 20 else 2
    def hload(st):
        for k in range(nks(st)):
            if k % 4 == 0: a(f's_add_u32 s{sTmp}, s{sHo}, {(st*KS+k)*1024}')
            a(f'buffer_load_dwordx4 {v(HB+((st%4)*8+k)*4,4)}, v{vL16}, {s(SH,4)}, s{sTmp} offen offset:{1024*(k%4)}'); vm.issue(('H', st))
    for st in range(3):
        dma(st); hload(st)
    a(f'v_lshrrev_b32 v{T0+1}, 4, v{vLane}')
    a(f'v_and_b32 v{T0+2}, 7, v{vLane}')
    a(f'v_lshl_add_u32 v{T0+2}, v{T0+1}, 3, v{T0+2}')
    a(f'v_lshlrev_b32 v{T0+2}, 4, v{T0+2}')
    for sl in range(4):
        a(f'v_add_u32 v{RA[sl]}, {sl*SLOT}, v{vL16}')
        a(f'v_add_u32 v{RH[sl]}, {sl*SLOT+4096}, v{T0+2}')
    a(f'v_and_b32 v{T0+3}, 15, v{vLane}')
    a(f's_lshl_b32 s{sTmp}, s{sT}, 4')
    a(f'v_add_u32 v{T0+3}, s{sTmp}, v{T0+3}')
    a(f'v_mul_u32_u24 v{T0+3}, 0x480, v{T0+3}')
    a(f's_mul_i32 s{sTmp}, s{sJ}, 144')
    a(f'v_lshl_add_u32 v{T0+3}, v{T0+1}, 3, v{T0+3}')
    a(f'v_add_u32 v{vXo}, s{sTmp}, v{T0+3}')
    a(f'v_cmp_gt_u32 vcc, 2, v{T0+1}')
    a(f'v_mov_b32 v{T0+4}, 0x7fff0000')
    a(f'v_cndmask_b32 v{vXo4}, v{T0+4}, v{vXo}, vcc')
    vm.wait(('W', 0))
    a('s_barrier')
    frs = [(st, k, i) for st in range(NSTG) for k in range(nks(st)) for i in range(5)]
    n = len(frs); PD = 6
    def rd(qi):
        st, k, i = frs[qi]
        if i < 4: a(f'ds_read_b128 {v(WF+4*(qi%NB),4)}, v{RA[st%RS]} offset:{k*4608+i*1024}')
        else: a(f'ds_read_b128 {v(WF+4*(qi%NB),4)}, v{RH[st%RS]} offset:{k*4608}')
    for qi in range(PD): rd(qi)
    for qi in range(n):
        st, k, i = frs[qi]
        if k == 4 and i == 0 and st + 1 < NSTG:
            vm.wait(('W', st + 1))
            a('s_barrier')
            if st + 3 < NSTG:
                dma(st + 3); hload(st + 3)
            if st == 17:
                for ii in range(5):
                    a(f'buffer_load_dwordx2 {v(XR+2*ii,2)}, v{vXo if ii<4 else vXo4}, {s(SX,4)}, 0 offen offset:{32*ii}'); vm.issue('x')
        if k == 0 and i == 0: vm.wait(('H', st))
        if qi + PD < n:
            rd(qi + PD); a(f's_waitcnt lgkmcnt({PD})')
        else:
            a(f's_waitcnt lgkmcnt({n-1-qi})')
        kap = st * KS + k
        ac = (AC1 if kap < 144 else AC2) + 4 * i
        c = '0' if kap in (0, 144) else v(ac, 4)
        a(f'v_mfma_f32_16x16x32_bf16 {v(ac,4)}, {v(WF+4*(qi%NB),4)}, {v(HB+((st%4)*8+k)*4,4)}, {c}')
    vm.wait('x')
    for i in range(5):
        F = [AC1 + 4 * i + r for r in range(4)]; S = [AC2 + 4 * i + r for r in range(4)]
        tm = [WF + r for r in range(4)]; xs = [WF + 4 + r for r in range(4)]
        for r in range(4): a(f'v_mul_f32 v{tm[r]}, s{sNL2E}, v{F[r]}')
        for r in range(4): a(f'v_exp_f32 v{tm[r]}, v{tm[r]}')
        for d in range(2):
            a(f'v_lshlrev_b32 v{xs[2*d]}, 16, v{XR+2*i+d}')
            a(f'v_and_b32 v{xs[2*d+1]}, 0xffff0000, v{XR+2*i+d}')
        for r in range(4): a(f'v_add_f32 v{tm[r]}, 1.0, v{tm[r]}')
        for r in range(4): a(f'v_rcp_f32 v{tm[r]}, v{tm[r]}')
        for r in range(4): a(f'v_mul_f32 v{F[r]}, v{F[r]}, v{S[r]}')
        for r in range(4): a(f'v_fmac_f32 v{xs[r]}, v{F[r]}, v{tm[r]}')
        o = WF + 8 + 2 * i
        for d in range(2): a(f'v_cvt_pk_bf16_f32 v{o+d}, v{xs[2*d]}, v{xs[2*d+1]}')
        a(f'buffer_store_dwordx2 {v(o,2)}, v{vXo if i<4 else vXo4}, {s(SO,4)}, 0 offen offset:{32*i}')
    a.label('K2_END')
    a('s_endpgm')
    return a, 256, 256, LDS, NV

def main(out):
    ks = [('prep_kernel', gen_k0()), ('gemm1_kernel', gen_k1()), ('gemm2_kernel', gen_k2())]
    hdr = open('cdna_kernels/' + NAME + '.s.ref').read().split('; Override launch')[0]
    txt = hdr
    for nm, (a, g, b, lds, nv) in ks:
        txt += f'; @launch kernel={nm} grid=({g},1,1) block=({b},1,1) lds={lds}\n'
    txt += '.amdgcn_target "amdgcn-amd-amdhsa--gfx950"\n.text\n'
    for nm, (a, g, b, lds, nv) in ks: txt += kernel_text(nm, a)
    txt += '.section .rodata,"a"\n'
    for nm, (a, g, b, lds, nv) in ks: txt += desc_text(nm, nv)
    open(out, 'w').write(txt)

if __name__ == '__main__':
    main(sys.argv[1] if len(sys.argv) > 1 else 'cdna_kernels/' + NAME + '.s')
```
